```python
import torch

def _softmax(x, axis=-1):
    return torch.softmax(x, dim=axis)
def _gelu(x):
    return torch.nn.functional.gelu(x, approximate="tanh")
def _silu(x):
    return torch.nn.functional.silu(x)
def _sigmoid(x):
    return torch.sigmoid(x)
def _layernorm(x, axis=-1, eps=1e-5):
    m = x.mean(dim=axis, keepdim=True)
    v = x.var(dim=axis, keepdim=True, unbiased=False)
    return (x - m) / torch.sqrt(v + eps)
def _scatter_add(tgt, idx, src, axis=0):
    return tgt.clone().index_add_(axis, idx, src)
def _segment_sum(src, seg, n):
    out = torch.zeros((n,) + src.shape[1:], dtype=src.dtype)
    return out.index_add_(0, seg, src)
def _pad(x, pw):
    flat = tuple(v for pair in reversed(pw) for v in pair)
    return torch.nn.functional.pad(x, flat)

kernel_name = 'concat_heads__ssm_conv_h3__ssm_conv_s4__prompt'

def setup_inputs():

    _w = (lambda a: (lambda t: t.to(torch.bfloat16) if t.is_floating_point() else t)(torch.as_tensor(a)))
    def _A_setup():
        B, S, D = 1, 2048, 640
        ks = 4
        return {
            "q": _w((lambda *s: torch.randn(*s, dtype=torch.bfloat16) * 0.05)(B, S, D)),
            "k": _w((lambda *s: torch.randn(*s, dtype=torch.bfloat16) * 0.2)(B, S, D)),
            "v": _w((lambda *s: torch.randn(*s, dtype=torch.bfloat16) * 0.2)(B, S, D)),
            "shift_k": _w((lambda *s: torch.randn(*s, dtype=torch.bfloat16) * 0.2)(D, ks) * 0.5),
            "ssm_k": _w((lambda *s: torch.randn(*s, dtype=torch.bfloat16) * 0.8)(D, S) * (1.0 / S ** 0.5)),
            "ssm_D": _w((lambda *s: torch.randn(*s, dtype=torch.bfloat16) * 0.2)(D)),
        }
    _A_in = _A_setup()

    def _B_setup():
        B, L, D, N = 1, 2048, 640, 192
        A_re = -(lambda _x: torch.exp(torch.as_tensor(_x)))((lambda *s: torch.randn(*s, dtype=torch.bfloat16) * 3.2)(D, N))
        A_im = torch.pi * (lambda *s: torch.randn(*s, dtype=torch.bfloat16) * 0.05)(D, N)
        B_re = (lambda *s: torch.randn(*s, dtype=torch.bfloat16) * 0.1)(D, N)
        B_im = (lambda *s: torch.randn(*s, dtype=torch.bfloat16) * 0.1)(D, N)
        C_re = (lambda *s: torch.randn(*s, dtype=torch.bfloat16) * 0.1)(D, N)
        C_im = (lambda *s: torch.randn(*s, dtype=torch.bfloat16) * 0.1)(D, N)
        log_dt = (lambda *s: torch.randn(*s, dtype=torch.bfloat16) * 0.05)(D) * 0.5 - 4.0
        Dskip = (lambda *s: torch.randn(*s, dtype=torch.bfloat16) * 0.05)(D)
        return {
            "u": _w((lambda *s: torch.randn(*s, dtype=torch.bfloat16) * 0.05)(B, L, D)),
            "A_re": _w(A_re),
            "A_im": _w(A_im),
            "B_re": _w(B_re),
            "B_im": _w(B_im),
            "C_re": _w(C_re),
            "C_im": _w(C_im),
            "log_dt": _w(log_dt),
            "Dskip": _w(Dskip),
        }
    _B_in = _B_setup()

    return {
        "A_q": _A_in["q"],
        "A_k": _A_in["k"],
        "A_v": _A_in["v"],
        "A_shift_k": _A_in["shift_k"],
        "A_ssm_k": _A_in["ssm_k"],
        "A_ssm_D": _A_in["ssm_D"],
        "B_u": _B_in["u"],
        "B_A_re": _B_in["A_re"],
        "B_A_im": _B_in["A_im"],
        "B_B_re": _B_in["B_re"],
        "B_B_im": _B_in["B_im"],
        "B_C_re": _B_in["C_re"],
        "B_C_im": _B_in["C_im"],
        "B_log_dt": _B_in["log_dt"],
        "B_Dskip": _B_in["Dskip"],
    }

def reference(A_q, A_k, A_v, A_shift_k, A_ssm_k, A_ssm_D, B_u, B_A_re, B_A_im, B_B_re, B_B_im, B_C_re, B_C_im, B_log_dt, B_Dskip):
    def _A_ref(q, k, v, shift_k, ssm_k, ssm_D):
        B, S, D = q.shape
        ks = shift_k.shape[-1]
        k_pad = _pad(k, ((0, 0), (ks - 1, 0), (0, 0)))
        k_shift = torch.zeros_like(k)
        for t in range(ks):
            k_shift = k_shift + k_pad[:, t:t + S, :] * shift_k[:, ks - 1 - t][None, None, :]
        kv = k_shift * v
        L = 2 * S
        kv_pad = _pad(kv, ((0, 0), (0, S), (0, 0)))
        kf_pad = _pad(ssm_k, ((0, 0), (0, S)))
        kv_f = (lambda x, axes=(-2,-1): torch.fft.rfft2(x.float(), dim=axes))(kv_pad[:, None, :, :], axes=(1, 2))
        kf_f = (lambda x, axes=(-2,-1): torch.fft.rfft2(x.float(), dim=axes))(kf_pad[:, None, :], axes=(1, 2))
        kf_f = (lambda x, *d: x.permute(*d))(kf_f, 1, 2, 0)
        y_f = kv_f * kf_f[None, :, :, :]
        y = (lambda x, s, axes=(-2,-1): torch.fft.irfft2(x, s=s, dim=axes).to(torch.bfloat16))(y_f, (1, L), axes=(1, 2))[:, 0, :S, :]
        y = y + kv * ssm_D[None, None, :]
        return q * y

    def _B_ref(u, A_re, A_im, B_re, B_im, C_re, C_im, log_dt, Dskip):
        Bsz, L, D = u.shape
        dt = torch.exp(log_dt)[:, None]
        A = A_re + 1j * A_im
        Bc = B_re + 1j * B_im
        Cc = C_re + 1j * C_im
        logdA = dt * A
        dB = dt * Bc
        l = (lambda x, dt: x.to(dt))(torch.arange(L), A_re.dtype)
        P = torch.exp(logdA[:, :, None] * l[None, None, :])
        K = torch.einsum("dn,dnl,dn->dl", Cc, P, dB).real
        L2 = 2 * L
        Kp = _pad(K, ((0, 0), (0, L)))
        up = (lambda x, *d: x.permute(*d))(u, 0, 2, 1)
        up = _pad(up, ((0, 0), (0, 0), (0, L)))
        Kf = (lambda x, axes=(-2,-1): torch.fft.rfft2(x.float(), dim=axes))(Kp[:, None, :], axes=(-2, -1))
        Uf = (lambda x, axes=(-2,-1): torch.fft.rfft2(x.float(), dim=axes))(up[:, :, None, :], axes=(-2, -1))
        Yf = Uf * Kf[None, :, :, :]
        y = (lambda x, s, axes=(-2,-1): torch.fft.irfft2(x, s=s, dim=axes).to(torch.bfloat16))(Yf, (1, L2), axes=(-2, -1))[:, :, 0, :L]
        y = (lambda x, *d: x.permute(*d))(y, 0, 2, 1) + u * Dskip[None, None, :]
        return y

    a = _A_ref(A_q, A_k, A_v, A_shift_k, A_ssm_k, A_ssm_D)
    b = _B_ref(B_u, B_A_re, B_A_im, B_B_re, B_B_im, B_C_re, B_C_im, B_log_dt, B_Dskip)
    return torch.concatenate([a, b], axis=-1)
```

```python
import re

TRANS = ("v_exp_f32", "v_log_f32", "v_rcp_f32", "v_rsq_f32", "v_sqrt_f32", "v_sin_f32", "v_cos_f32")
_REG = re.compile(r"^(-|\|)?(?:abs\()?([vsa])(?:(\d+)|\[(\d+):(\d+)\])")


def regs_of(op):
    op = op.strip()
    if op in ("vcc",):
        return [("s", 106), ("s", 107)]
    if op in ("exec",):
        return [("s", 126), ("s", 127)]
    if op == "m0":
        return [("s", 124)]
    m = _REG.match(op)
    if not m:
        return []
    k = m.group(2)
    if m.group(3) is not None:
        return [(k, int(m.group(3)))]
    return [(k, i) for i in range(int(m.group(4)), int(m.group(5)) + 1)]


class Ins:
    __slots__ = ("mn", "kind", "w", "r", "ws", "dpp", "srcc", "passes", "wide_store")


class Asm:
    def __init__(self):
        self.lines = []
        self.hist = []
        self.maxv = 0
        self.maxs = 0
        self.count = 0

    def raw(self, text):
        self.lines.append(text)

    def comment(self, text):
        self.lines.append("    ; " + text)

    def label(self, name, pad=True):
        if pad:
            self.drain()
        self.lines.append(name + ":")
        self.hist = []

    def drain(self):
        need = 0
        dist = 0
        for p in reversed(self.hist):
            lim = 0
            if p.kind == "mfma":
                lim = 8 if p.passes == 4 else 12
            elif p.kind in ("valu", "trans"):
                lim = 5 if any(k == "s" for k, _ in p.w) else 2
            elif p.wide_store:
                lim = 2
            elif p.kind == "salu":
                lim = 1
            need = max(need, lim - dist)
            dist += p.ws
            if dist > 16:
                break
        if need > 0:
            self.nop(need)

    def nop(self, n):
        while n > 0:
            k = min(n, 16)
            self._append("s_nop %d" % (k - 1), self._mk("s_nop", "nop", [], [], ws=k))
            n -= k

    def _mk(self, mn, kind, w, r, ws=1, dpp=False, srcc=(), passes=0, wide_store=False):
        i = Ins()
        i.mn, i.kind, i.w, i.r, i.ws, i.dpp, i.srcc, i.passes, i.wide_store = mn, kind, set(w), set(r), ws, dpp, set(srcc), passes, wide_store
        return i

    def _append(self, text, ins):
        self.lines.append("    " + text)
        self.hist.append(ins)
        if len(self.hist) > 40:
            self.hist = self.hist[-30:]
        self.count += 1

    def parse(self, text):
        t = text.split(";")[0].strip()
        parts = t.split(None, 1)
        mn = parts[0]
        rest = parts[1] if len(parts) > 1 else ""
        ops = []
        depth = 0
        cur = ""
        for ch in rest:
            if ch == "[":
                depth += 1
            if ch == "]":
                depth -= 1
            if ch == "," and depth == 0:
                ops.append(cur.strip())
                cur = ""
            else:
                cur += ch
        if cur.strip():
            ops.append(cur.strip())
        mods = ""
        if ops:
            last = ops[-1].split(None, 1)
            ops[-1] = last[0]
            if len(last) > 1:
                mods = last[1]
        base = re.sub(r"_(e32|e64|dpp|sdwa)$", "", mn)
        R = [regs_of(o) for o in ops]
        flat = lambda L: [x for l in L for x in l]
        dpp = mn.endswith("_dpp")
        if base.startswith("v_mfma"):
            passes = 4 if "16x16x32" in base else 8
            return self._mk(base, "mfma", R[0], flat(R[1:3]), srcc=R[3], passes=passes)
        if base.startswith("v_"):
            kind = "trans" if base in TRANS else "valu"
            w = list(R[0])
            r = flat(R[1:])
            if base.startswith("v_cmp"):
                pass
            if base in ("v_add_co_u32", "v_addc_co_u32", "v_sub_co_u32", "v_subb_co_u32"):
                w += R[1]
                r = flat(R[2:])
            if base.startswith("v_fmac") or base.startswith("v_dot2c") or dpp or base.startswith("v_permlane") or base == "v_writelane_b32":
                r += R[0]
            if base.startswith("v_permlane"):
                w += R[1]
            if base == "v_cndmask_b32" and len(ops) == 3:
                r += regs_of("vcc")
            return self._mk(base, kind, w, r, dpp=dpp)
        if base.startswith("ds_read") or base.startswith("ds_bpermute") or base.startswith("ds_swizzle"):
            return self._mk(base, "ds", R[0], flat(R[1:]))
        if base.startswith("ds_"):
            return self._mk(base, "ds", [], flat(R))
        if base.startswith(("buffer_load", "global_load")):
            if " lds" in (" " + mods) or "_lds_" in base:
                return self._mk(base, "vmem", [], flat(R) + regs_of("m0"))
            return self._mk(base, "vmem", R[0], flat(R[1:]))
        if base.startswith(("buffer_store", "global_store", "buffer_atomic", "global_atomic")):
            wide = base.endswith(("x3", "x4"))
            return self._mk(base, "vmem", [], flat(R), wide_store=wide)
        if base.startswith("s_nop"):
            return self._mk(base, "nop", [], [], ws=int(ops[0]) + 1)
        if base.startswith(("s_load", "s_buffer_load", "s_memtime", "s_memrealtime")):
            return self._mk(base, "smem", R[0], flat(R[1:]))
        if base.startswith(("s_waitcnt", "s_barrier", "s_branch", "s_cbranch", "s_endpgm", "s_setprio", "s_sleep", "s_cmp", "s_bitcmp")):
            return self._mk(base, "other", [], flat(R))
        if base.startswith("s_"):
            w = list(R[0]) if R else []
            if "saveexec" in base:
                w += regs_of("exec")
            return self._mk(base, "salu", w, flat(R[1:]))
        if base.startswith("buffer_"):
            return self._mk(base, "other", [], [])
        raise ValueError("unknown instruction: " + text)

    def need(self, p, c):
        n = 0
        cr = c.r | c.srcc
        if p.kind in ("valu", "trans"):
            vw = {x for x in p.w if x[0] != "s"}
            sw = {x for x in p.w if x[0] == "s"}
            if vw & cr:
                if c.kind == "mfma":
                    n = max(n, 2)
                if c.dpp or c.mn.startswith("v_permlane"):
                    n = max(n, 2)
                if c.mn in ("v_readlane_b32", "v_readfirstlane_b32"):
                    n = max(n, 1)
                if p.kind == "trans":
                    n = max(n, 1)
            if sw & cr:
                if c.kind in ("valu", "trans", "mfma"):
                    n = max(n, 4 if c.mn in ("v_readlane_b32", "v_writelane_b32") else 2)
                if c.kind == "vmem":
                    n = max(n, 5)
                if c.kind in ("salu", "other", "smem"):
                    n = max(n, 1)
        if p.kind == "mfma":
            big = 8 if p.passes == 4 else 12
            if c.kind == "mfma":
                if p.w & c.r:
                    n = max(n, big)
                if p.w & c.srcc and not (p.w == c.srcc and p.passes == c.passes):
                    n = max(n, big - 2)
                if p.w & c.w and not (p.w == c.srcc):
                    n = max(n, big)
            else:
                if p.w & (cr | c.w):
                    n = max(n, big)
                if c.kind in ("valu", "trans") and (p.srcc & c.w):
                    n = max(n, 3 if p.passes == 4 else 7)
        if p.wide_store and c.kind in ("valu", "trans", "mfma", "ds", "vmem") and (p.r & c.w):
            n = max(n, 2)
        if p.kind == "salu" and ("s", 124) in p.w and ("s", 124) in cr:
            n = max(n, 1)
        return n

    def e(self, text):
        c = self.parse(text)
        for k, i in c.w | c.r | c.srcc:
            if k == "v":
                self.maxv = max(self.maxv, i)
            if k == "s" and i < 102:
                self.maxs = max(self.maxs, i)
        dist = 0
        pad = 0
        for p in reversed(self.hist):
            pad = max(pad, self.need(p, c) - dist)
            dist += p.ws
            if dist > 16:
                break
        if pad > 0:
            self.nop(pad)
        self._append(text, c)

    def text(self):
        return "\n".join(self.lines) + "\n"


def vr(a, n=1):
    return "v%d" % a if n == 1 else "v[%d:%d]" % (a, a + n - 1)


def sr(a, n=1):
    return "s%d" % a if n == 1 else "s[%d:%d]" % (a, a + n - 1)
```

```python
import sys
from asmlib import Asm, vr, sr

NAME = "concat_heads__ssm_conv_h3__ssm_conv_s4__prompt"
HEADER = open("cdna_kernels/%s.s.ref" % NAME).read().split("; Override launch geometry")[0]

CS = 17600
X0 = 64
X1 = 4680
K0 = 9224
K1 = 13448
YO = 64
TB = 128
LDS_BYTES = 8 * CS

S_Q, S_K, S_V, S_SHK, S_SSMK, S_SSMD, S_U, S_ARE = 8, 10, 12, 14, 16, 18, 20, 22
S_AIM, S_BRE, S_BIM, S_CRE, S_CIM, S_LDT, S_DSK, S_OUT = 24, 26, 28, 30, 32, 34, 36, 38
S_DBG, S_WS = 40, 42
S_GRP, S_ISB, S_WAVE, S_T0, S_T1 = 3, 4, 5, 6, 7
S_REG = 44
S_G16 = 45
S_CH = 46
S_LOOP = 47
S_WRAW = 48
S_W = 64
S_EX = 96
S_T2 = 98


def gen():
    a = Asm()
    e = a.e
    a.raw(HEADER.rstrip())
    a.raw("; @launch grid=(160,1,1) block=(512,1,1) lds=%d" % LDS_BYTES)
    a.raw('.amdgcn_target "amdgcn-amd-amdhsa--gfx950"')
    a.raw(".text")
    a.raw(".globl %s_kernel" % NAME)
    a.raw(".p2align 8")
    a.raw(".type %s_kernel,@function" % NAME)
    a.raw("%s_kernel:" % NAME)

    e("s_cmp_ge_u32 s2, 160")
    e("s_cbranch_scc1 L_end")
    e("s_load_dwordx16 s[8:23], s[0:1], 0")
    e("s_load_dwordx16 s[24:39], s[0:1], 64")
    e("s_load_dwordx4 s[40:43], s[0:1], 128")
    e("s_and_b32 %s, s2, 7" % sr(S_T0))
    e("s_lshr_b32 %s, s2, 3" % sr(S_T1))
    e("s_mul_i32 %s, %s, 10" % (sr(S_GRP), sr(S_T0)))
    e("s_add_u32 %s, %s, %s" % (sr(S_GRP), sr(S_GRP), sr(S_T1)))
    e("s_cmp_ge_u32 %s, 10" % sr(S_T1))
    e("s_cselect_b32 %s, 1, 0" % sr(S_ISB))
    e("s_cselect_b32 %s, 10, 0" % sr(S_T0))
    e("s_sub_u32 %s, %s, %s" % (sr(S_GRP), sr(S_GRP), sr(S_T0)))
    e("s_lshl_b32 %s, %s, 4" % (sr(S_G16), sr(S_GRP)))
    V_TID, V_LANE = 0, 1
    e("v_and_b32 v1, 63, v0")
    e("v_lshrrev_b32 v2, 6, v0")
    e("v_readfirstlane_b32 %s, v2" % sr(S_WAVE))
    e("s_mul_i32 %s, %s, %d" % (sr(S_REG), sr(S_WAVE), CS))
    e("s_lshl_b32 %s, %s, 3" % (sr(S_CH), sr(S_GRP)))
    e("s_add_u32 %s, %s, %s" % (sr(S_CH), sr(S_CH), sr(S_WAVE)))
    V_ROW = 3
    e("v_mul_u32_u24 v3, 5120, v0")
    e("v_add_u32 v3, %s, v3" % sr(S_G16))
    V_XA, V_XB, V_XA2, V_XB2 = 4, 5, 6, 7
    e("v_lshlrev_b32 v8, 3, v0")
    e("v_sub_u32 v4, 4088, v8")
    e("v_lshrrev_b32 v9, 3, v4")
    e("v_and_b32 v9, 32, v9")
    e("v_xor_b32 v4, v4, v9")
    e("v_sub_u32 v5, 4084, v8")
    e("v_lshrrev_b32 v9, 3, v5")
    e("v_and_b32 v9, 32, v9")
    e("v_xor_b32 v5, v5, v9")
    e("v_add_u32 v5, %d, v5" % X0)
    e("v_add_u32 v6, %d, v4" % (4 * CS))
    e("v_add_u32 v7, %d, v5" % (4 * CS))
    V_KST = 8
    e("v_lshlrev_b32 v8, 4, v1")
    e("v_add_u32 v8, %s, v8" % sr(S_REG))
    e("v_add_u32 v8, 56, v8")
    e("s_waitcnt lgkmcnt(0)")
    e("s_cmp_eq_u32 %s, 1" % sr(S_ISB))
    e("s_cbranch_scc1 L_partB")

    def zero_fill(vt):
        e("v_mov_b32 %s, 0" % vr(vt))
        e("v_mov_b32 %s, 0" % vr(vt + 1))
        e("v_lshlrev_b32 %s, 3, v1" % vr(vt + 2))
        e("v_add_u32 %s, %s, %s" % (vr(vt + 2), sr(S_REG), vr(vt + 2)))
        e("v_mov_b32 %s, %s" % (vr(vt + 3), sr(S_REG)))
        e("ds_write_b64 %s, %s offset:%d" % (vr(vt + 2), vr(vt, 2), X0 + 4096))
        e("ds_write_b64 %s, %s offset:%d" % (vr(vt + 2), vr(vt, 2), X1 + 4096))
        e("ds_write_b64 %s, %s offset:%d" % (vr(vt + 2), vr(vt, 2), K1))
        e("ds_write_b32 %s, %s offset:%d" % (vr(vt + 3), vr(vt), X0 + 4 * 1015))

    def k_store(W, prev, O, chunk):
        e("v_alignbit_b32 %s, %s, %s, 16" % (vr(O), vr(W), vr(prev)))
        for i in range(1, 4):
            e("v_alignbit_b32 %s, %s, %s, 16" % (vr(O + i), vr(W + i), vr(W + i - 1)))
        e("ds_write_b128 %s, %s offset:%d" % (vr(V_KST), vr(W, 4), K1 + 1024 * chunk))
        e("ds_write_b128 %s, %s offset:%d" % (vr(V_KST), vr(O, 4), K0 + 1024 * chunk))

    def x_store(ch, D):
        xa, xb = (V_XA, V_XB) if ch < 4 else (V_XA2, V_XB2)
        off = (ch & 3) * CS
        e("ds_write_b64 %s, %s offset:%d" % (vr(xa), vr(D, 2), off + X1))
        e("ds_write_b32 %s, %s offset:%d" % (vr(xa), vr(D + 1), off + X0))
        e("ds_write_b32 %s, %s offset:%d" % (vr(xb), vr(D), off))

    KR = 16
    VR = 44
    SK = 60
    SP = 76
    V_D = 80
    T = 84
    e("s_lshl_b32 %s, %s, 6" % (sr(S_T0), sr(S_GRP)))
    e("s_load_dwordx16 %s, %s, %s" % (sr(S_WRAW, 16), sr(S_SHK, 2), sr(S_T0)))
    e("s_lshl_b32 %s, %s, 12" % (sr(S_T0), sr(S_CH)))
    e("v_lshlrev_b32 v9, 4, v1")
    e("v_add_u32 v9, %s, v9" % sr(S_T0))
    for c in range(4):
        e("global_load_dwordx4 %s, v9, %s offset:%d" % (vr(SK + 4 * c, 4), sr(S_SSMK, 2), 1024 * c))
    e("v_subrev_u32 v10, 4, v9")
    e("v_max_i32 v10, 0, v10")
    e("global_load_dword %s, v10, %s" % (vr(SP), sr(S_SSMK, 2)))
    for c in range(1, 4):
        e("global_load_dword %s, v9, %s offset:%d" % (vr(SP + c), sr(S_SSMK, 2), 1024 * c - 4))
    e("s_lshl_b32 %s, %s, 1" % (sr(S_T0), sr(S_CH)))
    e("v_mov_b32 v10, %s" % sr(S_T0))
    e("v_mov_b32 %s, 0" % vr(V_D))
    e("global_load_short_d16_hi %s, v10, %s" % (vr(V_D), sr(S_SSMD, 2)))
    for i in range(12):
        e("v_mov_b32 %s, 0" % vr(KR + i))
    e("s_cmp_eq_u32 %s, 0" % sr(S_WAVE))
    e("s_cbranch_scc1 L_nohalo")
    e("s_mov_b64 exec, 1")
    for r in range(3):
        e("global_load_dwordx4 %s, v3, %s offset:%d" % (vr(KR + 4 * r, 4), sr(S_K, 2), -3840 + 1280 * r))
    e("s_mov_b64 exec, -1")
    a.label("L_nohalo")
    for r in range(4):
        e("global_load_dwordx4 %s, v3, %s offset:%d" % (vr(KR + 12 + 4 * r, 4), sr(S_K, 2), 1280 * r))
        e("global_load_dwordx4 %s, v3, %s offset:%d" % (vr(VR + 4 * r, 4), sr(S_V, 2), 1280 * r))
    zero_fill(T)
    e("s_waitcnt lgkmcnt(0)")
    for c in range(8):
        for h in range(2):
            raw = S_WRAW + 2 * c + h
            e("s_lshl_b32 %s, %s, 16" % (sr(S_W + 4 * c + 2 * h), sr(raw)))
            e("s_and_b32 %s, %s, 0xffff0000" % (sr(S_W + 4 * c + 2 * h + 1), sr(raw)))
    e("s_waitcnt vmcnt(8)")
    e("s_mov_b64 exec, 1")
    e("v_lshlrev_b32 %s, 16, %s" % (vr(T), vr(SK)))
    e("v_add_f32 %s, %s, %s" % (vr(T), vr(T), vr(V_D)))
    e("v_and_b32 %s, 0xffff0000, %s" % (vr(T + 1), vr(SK)))
    e("v_cvt_pk_bf16_f32 %s, %s, %s" % (vr(SK), vr(T), vr(T + 1)))
    e("v_mov_b32 %s, 0" % vr(SP))
    e("s_mov_b64 exec, -1")
    for c in range(4):
        k_store(SK + 4 * c, SP + c, T + 4 * (c & 1), c)
    e("s_waitcnt vmcnt(0)")
    for i in range(12):
        e("v_mov_b32_dpp %s, %s wave_shr:1 row_mask:0xf bank_mask:0xf" % (vr(KR + i), vr(KR + 16 + i)))
    KU = T
    VU = T + 8
    ACC = T + 12
    DD = [T + 16, T + 18]
    for ch in range(8):
        j, hi = ch >> 1, ch & 1
        for r in range(7):
            if hi:
                e("v_and_b32 %s, 0xffff0000, %s" % (vr(KU + r), vr(KR + 4 * r + j)))
            else:
                e("v_lshlrev_b32 %s, 16, %s" % (vr(KU + r), vr(KR + 4 * r + j)))
        for r in range(4):
            if hi:
                e("v_and_b32 %s, 0xffff0000, %s" % (vr(VU + r), vr(VR + 4 * r + j)))
            else:
                e("v_lshlrev_b32 %s, 16, %s" % (vr(VU + r), vr(VR + 4 * r + j)))
        for i in range(4):
            e("v_mul_f32 %s, %s, %s" % (vr(ACC + i), sr(S_W + 4 * ch + 3), vr(KU + i)))
        for tap in (2, 1, 0):
            for i in range(4):
                e("v_fmac_f32 %s, %s, %s" % (vr(ACC + i), sr(S_W + 4 * ch + tap), vr(KU + i + 3 - tap)))
        for i in range(4):
            e("v_mul_f32 %s, %s, %s" % (vr(ACC + i), vr(ACC + i), vr(VU + i)))
        D = DD[ch & 1]
        e("v_cvt_pk_bf16_f32 %s, %s, %s" % (vr(D), vr(ACC + 3), vr(ACC + 2)))
        e("v_cvt_pk_bf16_f32 %s, %s, %s" % (vr(D + 1), vr(ACC + 1), vr(ACC + 0)))
        x_store(ch, D)
    QR = 104
    e("s_lshl_b32 %s, %s, 8" % (sr(S_T0), sr(S_WAVE)))
    e("v_add_u32 v9, %s, v1" % sr(S_T0))
    e("v_mul_u32_u24 v9, 1280, v9")
    e("v_add_u32 v9, %s, v9" % sr(S_G16))
    for it in range(4):
        e("global_load_dwordx4 %s, v9, %s" % (vr(QR + 4 * it, 4), sr(S_Q, 2)))
        if it < 3:
            e("v_add_u32 v9, 81920, v9")
    e("s_branch L_conv")

    a.label("L_partB", pad=False)
    UR = 104
    PR = 16
    for i in range(18):
        e("v_mov_b32 %s, 0" % vr(PR + i))
    e("v_mov_b32 v34, 0")
    e("v_mov_b32 v35, 0")
    e("s_mul_i32 %s, %s, 384" % (sr(S_T0), sr(S_CH)))
    e("v_lshlrev_b32 v9, 1, v1")
    e("v_add_u32 v9, %s, v9" % sr(S_T0))
    e("s_lshl_b32 %s, %s, 1" % (sr(S_T0), sr(S_CH)))
    e("v_mov_b32 v10, %s" % sr(S_T0))
    e("global_load_short_d16_hi v34, v10, %s" % sr(S_LDT, 2))
    e("global_load_short_d16_hi v35, v10, %s" % sr(S_DSK, 2))
    for p in range(3):
        for i, sp in enumerate((S_ARE, S_AIM, S_BRE, S_BIM, S_CRE, S_CIM)):
            e("global_load_short_d16_hi %s, v9, %s offset:%d" % (vr(PR + 6 * p + i), sr(sp, 2), 128 * p))
    for r in range(4):
        e("global_load_dwordx4 %s, v3, %s offset:%d" % (vr(UR + 4 * r, 4), sr(S_U, 2), 1280 * r))
    TS = 4352
    V_SW = 36
    V_SR = 40
    e("v_lshrrev_b32 v9, 2, v1")
    e("v_mul_u32_u24 v9, 272, v9")
    e("v_and_b32 v10, 3, v1")
    e("v_lshl_add_u32 v9, v10, 2, v9")
    e("v_add_u32 %s, %s, v9" % (vr(V_SW), sr(S_REG)))
    for t in range(1, 4):
        e("v_add_u32 %s, %d, %s" % (vr(V_SW + t), TS * t, vr(V_SW)))
    e("v_lshrrev_b32 v9, 4, v1")
    e("v_mul_u32_u24 v9, 272, v9")
    e("v_and_b32 v10, 15, v1")
    e("v_lshl_add_u32 v9, v10, 4, v9")
    e("v_add_u32 %s, %s, v9" % (vr(V_SR), sr(S_REG)))
    AC = 44
    for i in range(12):
        e("v_mov_b32 %s, 0" % vr(AC + i))
    V_DT, V_DTL, V_DTP = 41, 42, 43
    e("s_waitcnt vmcnt(22)")
    e("v_mul_f32 v9, 0x3fb8aa3b, v34")
    e("v_exp_f32 v9, v9")
    e("v_cvt_pk_bf16_f32 v9, v9, v9")
    e("v_lshlrev_b32 %s, 16, v9" % vr(V_DT))
    e("v_mul_f32 %s, 0x3fb8aa3b, %s" % (vr(V_DTL), vr(V_DT)))
    e("v_mul_f32 %s, 0.15915494, %s" % (vr(V_DTP), vr(V_DT)))
    e("s_mov_b64 exec, 1")
    e("v_mov_b32 %s, v35" % vr(AC))
    e("s_mov_b64 exec, -1")
    e("s_waitcnt vmcnt(4)")
    e("s_mov_b32 %s, 0" % sr(S_LOOP))
    a.label("L_kgen")
    Are, Aim, Bre, Bim, Cre, Cim = [PR + i for i in range(6)]
    R = 56
    EA, TH = R, R + 1
    E1, E2, E4, E128 = R + 2, R + 4, R + 6, R + 8
    VO, VE, V2 = R + 10, R + 12, R + 14
    Q = R + 16
    WS = [R + 18, R + 20]
    TMP = R + 22
    PK = R + 34
    e("v_mul_f32 %s, %s, %s" % (vr(EA), vr(V_DTL), vr(Are)))
    e("v_mul_f32 %s, %s, %s" % (vr(TH), vr(V_DTP), vr(Aim)))
    e("v_mul_f32 %s, %s, %s" % (vr(Q), vr(Cre), vr(Bre)))
    e("v_mul_f32 %s, %s, %s" % (vr(Q + 1), vr(Cre), vr(Bim)))
    e("v_fma_f32 %s, -%s, %s, %s" % (vr(Q), vr(Cim), vr(Bim), vr(Q)))
    e("v_fma_f32 %s, %s, %s, %s" % (vr(Q + 1), vr(Cim), vr(Bre), vr(Q + 1)))
    e("v_mul_f32 %s, %s, %s" % (vr(Q), vr(V_DT), vr(Q)))
    e("v_mul_f32 %s, %s, %s" % (vr(Q + 1), vr(V_DT), vr(Q + 1)))
    bases = [(E1, None, False), (VO, "0x41000000", True), (E128, "0x43000000", False)]
    for bi, (dst, mul, conj) in enumerate(bases):
        m, f = TMP + 4 * bi, TMP + 4 * bi + 1
        if mul is None:
            e("v_exp_f32 %s, %s" % (vr(m), vr(EA)))
            e("v_fract_f32 %s, %s" % (vr(f), vr(TH)))
        else:
            e("v_mul_f32 %s, %s, %s" % (vr(m), mul, vr(EA)))
            e("v_mul_f32 %s, %s, %s" % (vr(f), mul, vr(TH)))
            e("v_exp_f32 %s, %s" % (vr(m), vr(m)))
            e("v_fract_f32 %s, %s" % (vr(f), vr(f)))
    for bi, (dst, mul, conj) in enumerate(bases):
        m, f = TMP + 4 * bi, TMP + 4 * bi + 1
        e("v_cos_f32 %s, %s" % (vr(dst), vr(f)))
        e("v_sin_f32 %s, %s" % (vr(dst + 1), vr(f)))
    for bi, (dst, mul, conj) in enumerate(bases):
        m = TMP + 4 * bi
        e("v_mul_f32 %s, %s, %s" % (vr(dst), vr(m), vr(dst)))
        if conj:
            e("v_mul_f32_e64 %s, -%s, %s" % (vr(dst + 1), vr(m), vr(dst + 1)))
        else:
            e("v_mul_f32 %s, %s, %s" % (vr(dst + 1), vr(m), vr(dst + 1)))

    tmpi = [0]
    pkfree = [PK + i for i in range(12)]
    pending = {0: None, 1: None, 2: None, 3: None}

    def cmul_ops(d, x, y):
        t = TMP + 2 * (tmpi[0] % 6)
        tmpi[0] += 1
        return [
            "v_mul_f32 %s, %s, %s" % (vr(t), vr(x), vr(y)),
            "v_mul_f32 %s, %s, %s" % (vr(t + 1), vr(x), vr(y + 1)),
            "v_fma_f32 %s, -%s, %s, %s" % (vr(d), vr(x + 1), vr(y + 1), vr(t)),
            "v_fma_f32 %s, %s, %s, %s" % (vr(d + 1), vr(x + 1), vr(y), vr(t + 1)),
        ]

    def out_ops(src, tile, col):
        p = pkfree.pop(0)
        if src is None:
            ops = ["v_mov_b32 %s, 0x3f80" % vr(p)]
        else:
            ops = ["v_cvt_pk_bf16_f32 %s, %s, %s" % (vr(p), vr(src), vr(src + 1))]
        return ops, ("st", tile, col, p)

    def flush_store(item):
        _, tile, col, p = item
        if pending[tile] is None:
            pending[tile] = (col, p)
        else:
            c0, p0 = pending[tile]
            pending[tile] = None
            e("ds_write2_b32 %s, %s, %s offset0:%d offset1:%d" % (vr(V_SW + tile), vr(p0), vr(p), 4 * c0, 4 * col))
            pkfree.extend([p0, p])

    chV_o = [("out", VO, 3, 1)]
    for i in range(3, 16, 2):
        chV_o += [("mul", VO, VO, V2), ("out", VO, 3, i)]
    chV_e = [("out", None, 3, 0), ("out", V2, 3, 2), ("mul", VE, V2, V2), ("out", VE, 3, 4)]
    for i in range(6, 16, 2):
        chV_e += [("mul", VE, VE, V2), ("out", VE, 3, i)]
    pre = [("mul", V2, VO, VO), ("mul", E2, E1, E1), ("mul", E4, E2, E2)]

    def qcol(aa):
        if aa < 2:
            return (0, 8 * aa)
        if aa < 4:
            return (1, 4 * (aa - 2))
        if aa < 8:
            return (1, 8 + 2 * (aa - 4))
        return (2, aa - 8)

    chQ = []
    sub = [[], []]
    marks = {}
    for aa in range(17):
        tile, col = qcol(aa)
        chQ.append(("out", Q, tile, col))
        if aa < 8:
            n, mult = (7, E1) if aa < 2 else ((3, E2) if aa < 4 else (1, E4))
            w = WS[aa & 1]
            chQ.append(("wait_sub", aa & 1, aa))
            chQ.append(("mul", w, Q, mult))
            chQ.append(("start_sub", aa & 1, aa))
            steps = [("out", w, tile, col + 1)]
            for b in range(2, n + 1):
                steps += [("mul", w, w, mult), ("out", w, tile, col + b)]
            marks[aa] = steps
        if aa < 16:
            chQ.append(("mul", Q, Q, E128))

    def run_step(st):
        if st[0] == "mul":
            for o in cmul_ops(st[1], st[2], st[3]):
                e(o)
        elif st[0] == "out":
            ops, item = out_ops(st[1], st[2], st[3])
            for o in ops:
                e(o)
            flush_store(item)

    run_step(pre[0])
    run_step(pre[1])
    run_step(chQ.pop(0))
    run_step(pre[2])
    chains = {"q": chQ, "vo": chV_o, "ve": chV_e, "s0": sub[0], "s1": sub[1]}
    order = ["q", "vo", "s0", "ve", "s1"]
    while any(chains[c] for c in order):
        for c in order:
            ch = chains[c]
            while ch:
                st = ch[0]
                if st[0] == "wait_sub":
                    if chains["s%d" % st[1]]:
                        break
                    ch.pop(0)
                    continue
                if st[0] == "start_sub":
                    chains["s%d" % st[1]].extend(marks[st[2]])
                    ch.pop(0)
                    continue
                ch.pop(0)
                run_step(st)
                if st[0] == "mul":
                    break
    for tile in range(4):
        if pending[tile] is not None:
            c0, p0 = pending[tile]
            pending[tile] = None
            e("ds_write_b32 %s, %s offset:%d" % (vr(V_SW + tile), vr(p0), 16 * c0))
    for i in range(12):
        e("v_mov_b32 %s, %s" % (vr(PR + i), vr(PR + 6 + i)))
    for half in range(2):
        for kk in range(2):
            ks = 2 * half + kk
            for t in range(4):
                e("ds_read_b128 %s, %s offset:%d" % (vr(R + 16 * kk + 4 * t, 4), vr(V_SR), TS * t + 1088 * ks))
        for kk in range(2):
            e("s_waitcnt lgkmcnt(%d)" % (4 if kk == 0 else 0))
            F = R + 16 * kk
            e("v_mfma_f32_16x16x32_bf16 %s, %s, %s, %s" % (vr(AC, 4), vr(F, 4), vr(F + 12, 4), vr(AC, 4)))
            e("v_mfma_f32_16x16x32_bf16 %s, %s, %s, %s" % (vr(AC + 4, 4), vr(F + 4, 4), vr(F + 12, 4), vr(AC + 4, 4)))
            e("v_mfma_f32_16x16x32_bf16 %s, %s, %s, %s" % (vr(AC + 8, 4), vr(F + 12, 4), vr(F + 8, 4), vr(AC + 8, 4)))
    e("s_add_u32 %s, %s, 1" % (sr(S_LOOP), sr(S_LOOP)))
    e("s_cmp_lt_u32 %s, 3" % sr(S_LOOP))
    a.drain()
    e("s_cbranch_scc1 L_kgen")
    P = R
    for t in range(3):
        e("v_cvt_pk_bf16_f32 %s, %s, %s" % (vr(P + 2 * t), vr(AC + 4 * t), vr(AC + 4 * t + 1)))
        e("v_cvt_pk_bf16_f32 %s, %s, %s" % (vr(P + 2 * t + 1), vr(AC + 4 * t + 2), vr(AC + 4 * t + 3)))
    vi, vG, va, vb = R + 8, R + 9, R + 10, R + 11
    e("v_and_b32 %s, 15, v1" % vr(vi))
    e("v_lshrrev_b32 %s, 4, v1" % vr(vG))
    e("v_lshrrev_b32 %s, 1, %s" % (vr(va), vr(vG)))
    e("v_lshlrev_b32 %s, 8, %s" % (vr(va), vr(va)))
    e("v_lshl_add_u32 %s, %s, 4, %s" % (vr(va), vr(vi), vr(va)))
    e("v_and_b32 %s, 1, %s" % (vr(vb), vr(vG)))
    e("v_lshl_add_u32 %s, %s, 3, %s" % (vr(va), vr(vb), vr(va)))
    e("v_add_u32 %s, %s, %s" % (vr(va), sr(S_REG), vr(va)))
    e("ds_write_b64 %s, %s offset:%d" % (vr(va), vr(P, 2), TB))
    e("v_cmp_gt_u32 vcc, 32, v1")
    e("v_lshlrev_b32 %s, 3, %s" % (vr(va), vr(vi)))
    e("v_lshlrev_b32 %s, 2, %s" % (vr(vb), vr(vi)))
    e("v_cndmask_b32 %s, %s, %s, vcc" % (vr(va), vr(vb), vr(va)))
    e("v_lshl_add_u32 %s, %s, 7, %s" % (vr(va), vr(vG), vr(va)))
    e("v_add_u32 %s, %s, %s" % (vr(va), sr(S_REG), vr(va)))
    e("v_mov_b32 %s, 64" % vr(vb))
    e("v_cndmask_b32_e64 %s, %s, 4, vcc" % (vr(vb), vr(vb)))
    e("v_add_u32 %s, %s, %s" % (vr(vb), vr(va), vr(vb)))
    e("ds_write_b32 %s, %s offset:%d" % (vr(va), vr(P + 2), TB + 512))
    e("ds_write_b32 %s, %s offset:%d" % (vr(vb), vr(P + 3), TB + 512))
    e("v_lshlrev_b32 %s, 5, %s" % (vr(va), vr(vi)))
    e("v_lshl_add_u32 %s, %s, 3, %s" % (vr(va), vr(vG), vr(va)))
    e("v_add_u32 %s, %s, %s" % (vr(va), sr(S_REG), vr(va)))
    e("ds_write_b64 %s, %s offset:%d" % (vr(va), vr(P + 4, 2), TB + 1024))
    e("v_mov_b32 %s, %s" % (vr(va), sr(S_REG)))
    e("v_mov_b32 %s, 0" % vr(vb))
    e("ds_write_b32 %s, %s offset:%d" % (vr(va), vr(vb), TB - 4))
    zero_fill(R + 12)
    RR = R + 16
    PV = R + 20
    W = R + 24
    O = R + 28
    s0, s1, s2 = R + 32, R + 33, R + 34
    e("v_lshlrev_b32 %s, 4, v1" % vr(va))
    e("v_lshlrev_b32 %s, 3, v1" % vr(vb))
    e("v_add_u32 %s, 256, %s" % (vr(vb), vr(vb)))
    e("v_cndmask_b32 %s, %s, %s, vcc" % (vr(va), vr(vb), vr(va)))
    e("v_add_u32 %s, %s, %s" % (vr(va), sr(S_REG), vr(va)))
    e("ds_read_b64 %s, %s offset:%d" % (vr(RR, 2), vr(va), TB))
    e("ds_read_b64 %s, %s offset:%d" % (vr(RR + 2, 2), vr(va), TB + 8))
    e("v_cmp_gt_u32 %s, 33, v1" % sr(S_EX, 2))
    e("v_subrev_u32 %s, 2, %s" % (vr(vb), vr(va)))
    e("v_cndmask_b32_e64 %s, %s, %s, %s" % (vr(vb), vr(va), vr(vb), sr(S_EX, 2)))
    e("ds_read_u16_d16_hi %s, %s offset:%d" % (vr(PV), vr(vb), TB))
    e("v_mov_b32 %s, 0x01000100" % vr(s0))
    e("v_mov_b32 %s, 0x03020100" % vr(s1))
    e("v_cndmask_b32 %s, %s, %s, vcc" % (vr(s0), vr(s0), vr(s1)))
    e("v_mov_b32 %s, 0x05040302" % vr(s1))
    e("v_mov_b32 %s, 0x07060504" % vr(O))
    e("v_cndmask_b32 %s, %s, %s, vcc" % (vr(s1), vr(s1), vr(O)))
    e("v_mov_b32 %s, 0x01000100" % vr(s2))
    e("v_cndmask_b32 %s, %s, %s, vcc" % (vr(s2), vr(s2), vr(O)))
    e("s_waitcnt lgkmcnt(0)")
    e("v_perm_b32 %s, %s, %s, %s" % (vr(W), vr(RR), vr(RR), vr(s0)))
    e("v_perm_b32 %s, %s, %s, %s" % (vr(W + 1), vr(RR + 1), vr(RR), vr(s1)))
    e("v_perm_b32 %s, %s, %s, %s" % (vr(W + 2), vr(RR + 2), vr(RR + 1), vr(s2)))
    e("v_alignbit_b32 %s, %s, %s, 16" % (vr(W + 3), vr(RR + 2), vr(RR + 1)))
    e("v_cndmask_b32 %s, %s, %s, vcc" % (vr(W + 3), vr(W + 3), vr(RR + 3)))
    k_store(W, PV, O, 0)
    e("s_mov_b32 %s, 0x01000100" % sr(S_T0))
    e("s_mov_b32 %s, 0x03020302" % sr(S_T1))
    e("v_lshlrev_b32 %s, 2, v1" % vr(va))
    e("v_add_u32 %s, %s, %s" % (vr(va), sr(S_REG), vr(va)))
    W2_, O2_ = R + 36, R + 40
    e("ds_read_b32 %s, %s offset:%d" % (vr(W2_ + 1), vr(va), TB + 768))
    e("ds_read_u16 %s, %s offset:%d" % (vr(RR), vr(va), TB + 772))
    e("v_lshlrev_b32 %s, 1, v1" % vr(vb))
    e("v_add_u32 %s, %s, %s" % (vr(vb), sr(S_REG), vr(vb)))
    for c in (2, 3):
        e("ds_read_u16 %s, %s offset:%d" % (vr(RR + c), vr(vb), TB + 1024 + 128 * (c - 2)))
        e("ds_read_u16 %s, %s offset:%d" % (vr(R + 42 + c), vr(vb), TB + 1024 + 128 * (c - 2) + 2))
    e("v_and_b32 %s, 1, v1" % vr(s0))
    e("v_cmp_eq_u32 vcc, 0, %s" % vr(s0))
    e("v_mov_b32 %s, 0x05040504" % vr(s0))
    e("v_mov_b32 %s, 0x05040100" % vr(s1))
    e("v_cndmask_b32 %s, %s, %s, vcc" % (vr(s0), vr(s0), vr(s1)))
    e("s_waitcnt lgkmcnt(0)")
    e("v_perm_b32 %s, %s, %s, %s" % (vr(W2_), vr(W2_ + 1), vr(W2_ + 1), sr(S_T0)))
    e("v_perm_b32 %s, %s, %s, %s" % (vr(W2_ + 2), vr(W2_ + 1), vr(W2_ + 1), sr(S_T1)))
    e("v_perm_b32 %s, %s, %s, %s" % (vr(W2_ + 3), vr(RR), vr(RR), sr(S_T0)))
    k_store(W2_, W2_, O2_, 1)
    for c in (2, 3):
        Wc, Oc = (W, O) if c == 2 else (W2_, O2_)
        e("v_perm_b32 %s, %s, %s, %s" % (vr(Wc), vr(RR + c), vr(RR + c), sr(S_T0)))
        e("v_perm_b32 %s, %s, %s, %s" % (vr(Wc + 1), vr(RR + c), vr(RR + c), sr(S_T0)))
        e("v_perm_b32 %s, %s, %s, %s" % (vr(Wc + 2), vr(R + 42 + c), vr(RR + c), vr(s0)))
        e("v_perm_b32 %s, %s, %s, %s" % (vr(Wc + 3), vr(R + 42 + c), vr(R + 42 + c), sr(S_T0)))
        k_store(Wc, Wc, Oc, c)
    e("s_waitcnt vmcnt(0) lgkmcnt(0)")
    e("s_barrier")
    e("s_mov_b32 %s, 0x05040100" % sr(S_T0))
    e("s_mov_b32 %s, 0x07060302" % sr(S_T1))
    for ch in range(8):
        j, hi = ch >> 1, ch & 1
        D = R + 2 * (ch & 3)
        sel = sr(S_T1 if hi else S_T0)
        e("v_perm_b32 %s, %s, %s, %s" % (vr(D), vr(UR + 8 + j), vr(UR + 12 + j), sel))
        e("v_perm_b32 %s, %s, %s, %s" % (vr(D + 1), vr(UR + 0 + j), vr(UR + 4 + j), sel))
        x_store(ch, D)

    a.label("L_conv")
    XS = 16
    KS = 48
    AC = 64
    V_AK, V_AX, V_DB, V_XBASE = 96, 97, 98, 99
    vt0, vt1 = 100, 101
    e("v_and_b32 %s, 1, v1" % vr(vt0))
    e("v_mul_u32_u24 %s, %d, %s" % (vr(V_AK), K1 - K0, vr(vt0)))
    e("v_mul_u32_u24 %s, %d, %s" % (vr(V_XBASE), X1 - X0, vr(vt0)))
    e("v_bfe_u32 %s, v1, 1, 3" % vr(vt0))
    e("v_lshl_add_u32 %s, %s, 3, %s" % (vr(V_AK), vr(vt0), vr(V_AK)))
    e("v_lshrrev_b32 %s, 4, v1" % vr(vt1))
    e("v_lshl_add_u32 %s, %s, 4, %s" % (vr(V_AK), vr(vt1), vr(V_AK)))
    e("s_add_u32 %s, %s, %d" % (sr(S_T0), sr(S_REG), K0))
    e("v_add_u32 %s, %s, %s" % (vr(V_AK), sr(S_T0), vr(V_AK)))
    e("s_add_u32 %s, %s, %d" % (sr(S_T0), sr(S_REG), X0))
    e("v_add_u32 %s, %s, %s" % (vr(V_XBASE), sr(S_T0), vr(V_XBASE)))
    e("v_lshlrev_b32 %s, 6, %s" % (vr(vt0), vr(vt0)))
    e("v_sub_u32 %s, 448, %s" % (vr(V_DB), vr(vt0)))
    e("v_lshl_add_u32 %s, %s, 4, %s" % (vr(V_DB), vr(vt1), vr(V_DB)))

    def calc_ax():
        e("v_lshrrev_b32 %s, 3, %s" % (vr(vt0), vr(V_DB)))
        e("v_and_b32 %s, 32, %s" % (vr(vt0), vr(vt0)))
        e("v_xor_b32 %s, %s, %s" % (vr(vt0), vr(vt0), vr(V_DB)))
        e("v_add_u32 %s, %s, %s" % (vr(V_AX), vr(V_XBASE), vr(vt0)))
        e("v_add_u32 %s, 64, %s" % (vr(V_DB), vr(V_DB)))

    calc_ax()
    for i in range(32):
        e("v_mov_b32 %s, 0" % vr(AC + i))
    e("s_waitcnt lgkmcnt(0)")
    e("s_barrier")

    queue = []

    def ld_x(j, tag):
        for h in range(2):
            e("ds_read_b64 %s, %s offset:%d" % (vr(XS + 4 * j + 2 * h, 2), vr(V_AX), 512 * (7 - j) + 8 * h))
            queue.append(tag)

    def ld_k(aa, nxt, tag):
        for h in range(2):
            e("ds_read_b64 %s, %s offset:%d" % (vr(KS + 4 * (aa & 3) + 2 * h, 2), vr(V_AK), 512 * aa + 8 * h + (64 if nxt else 0)))
            queue.append(tag)

    state = {"done": 0}

    def wait_for(tags):
        last = max(i for i, t in enumerate(queue) if t in tags)
        if last < state["done"]:
            return
        n = len(queue) - 1 - last
        n = min(n, 15)
        e("s_waitcnt lgkmcnt(%d)" % n)
        state["done"] = len(queue) - n

    for j in range(7, 1, -1):
        ld_x(j, ("x", j))
    ld_k(0, False, ("k", 0))
    ld_x(1, ("x", 1))
    ld_k(1, False, ("k", 1))
    ld_x(0, ("x", 0))
    e("s_mov_b32 %s, 0" % sr(S_LOOP))
    a.label("L_loop")
    calc_ax()
    for aa in range(8):
        if aa + 2 <= 7:
            ld_k(aa + 2, False, ("k", aa + 2))
        else:
            ld_k(aa + 2 - 8, True, ("kn", aa + 2 - 8))
        for q in range(7, aa - 1, -1):
            j = q - aa
            wait_for([("k", aa), ("x", j)])
            e("v_mfma_f32_16x16x32_bf16 %s, %s, %s, %s" % (vr(AC + 4 * q, 4), vr(KS + 4 * (aa & 3), 4), vr(XS + 4 * j, 4), vr(AC + 4 * q, 4)))
            if q == 7:
                ld_x(j, ("xn", j))
    e("v_add_u32 %s, 64, %s" % (vr(V_AK), vr(V_AK)))
    e("s_add_u32 %s, %s, 1" % (sr(S_LOOP), sr(S_LOOP)))
    e("s_cmp_lt_u32 %s, 8" % sr(S_LOOP))
    e("s_cbranch_scc1 L_loop")
    vy = 96
    e("v_and_b32 %s, 1, v1" % vr(vt0))
    e("v_lshlrev_b32 %s, 2, %s" % (vr(vy), vr(vt0)))
    e("v_bfe_u32 %s, v1, 1, 3" % vr(vt0))
    e("v_lshl_add_u32 %s, %s, 6, %s" % (vr(vy), vr(vt0), vr(vy)))
    e("v_lshrrev_b32 %s, 4, v1" % vr(vt1))
    e("v_lshl_add_u32 %s, %s, 4, %s" % (vr(vy), vr(vt1), vr(vy)))
    e("v_add_u32 %s, %s, %s" % (vr(vy), sr(S_REG), vr(vy)))
    e("s_waitcnt lgkmcnt(0)")
    for q in range(8):
        P = XS + 2 * q
        e("v_cvt_pk_bf16_f32 %s, %s, %s" % (vr(P), vr(AC + 4 * q), vr(AC + 4 * q + 1)))
        e("v_cvt_pk_bf16_f32 %s, %s, %s" % (vr(P + 1), vr(AC + 4 * q + 2), vr(AC + 4 * q + 3)))
        e("ds_write_b32 %s, %s offset:%d" % (vr(vy), vr(P), YO + 512 * q))
        e("ds_write_b32 %s, %s offset:%d" % (vr(vy), vr(P + 1), YO + 512 * q + 8))
    va, vb, vo = 97, 98, 99
    e("v_bfe_u32 %s, v1, 2, 2" % vr(vt0))
    e("v_mul_u32_u24 %s, %d, %s" % (vr(va), CS, vr(vt0)))
    e("v_lshrrev_b32 %s, 4, v1" % vr(vt0))
    e("v_lshl_add_u32 %s, %s, 5, %s" % (vr(va), vr(vt0), vr(va)))
    e("v_and_b32 %s, 3, v1" % vr(vt0))
    e("v_lshl_add_u32 %s, %s, 3, %s" % (vr(va), vr(vt0), vr(va)))
    e("s_lshl_b32 %s, %s, 9" % (sr(S_T0), sr(S_WAVE)))
    e("v_add_u32 %s, %s, %s" % (vr(va), sr(S_T0), vr(va)))
    e("v_add_u32 %s, %d, %s" % (vr(vb), 4 * CS, vr(va)))
    e("s_lshl_b32 %s, %s, 8" % (sr(S_T0), sr(S_WAVE)))
    e("v_add_u32 %s, %s, v1" % (vr(vo), sr(S_T0)))
    e("v_mul_u32_u24 %s, 2560, %s" % (vr(vo), vr(vo)))
    e("s_mul_i32 %s, %s, 1280" % (sr(S_T0), sr(S_ISB)))
    e("s_add_u32 %s, %s, %s" % (sr(S_T0), sr(S_T0), sr(S_G16)))
    e("v_add_u32 %s, %s, %s" % (vr(vo), sr(S_T0), vr(vo)))
    e("s_waitcnt lgkmcnt(0)")
    e("s_barrier")
    Y = 32
    for it in range(4):
        e("ds_read_b64_tr_b16 %s, %s offset:%d" % (vr(Y + 4 * it, 2), vr(va), YO + 128 * it))
        e("ds_read_b64_tr_b16 %s, %s offset:%d" % (vr(Y + 4 * it + 2, 2), vr(vb), YO + 128 * it))
    e("s_cmp_eq_u32 %s, 1" % sr(S_ISB))
    e("s_cbranch_scc1 L_storeB")
    e("s_waitcnt vmcnt(0)")
    T = 48
    for it in range(4):
        e("s_waitcnt lgkmcnt(%d)" % (6 - 2 * it))
        for j in range(4):
            y, qq = Y + 4 * it + j, QR + 4 * it + j
            t = T + 4 * j
            e("v_lshlrev_b32 %s, 16, %s" % (vr(t), vr(y)))
            e("v_and_b32 %s, 0xffff0000, %s" % (vr(t + 1), vr(y)))
            e("v_lshlrev_b32 %s, 16, %s" % (vr(t + 2), vr(qq)))
            e("v_and_b32 %s, 0xffff0000, %s" % (vr(t + 3), vr(qq)))
            e("v_mul_f32 %s, %s, %s" % (vr(t), vr(t), vr(t + 2)))
            e("v_mul_f32 %s, %s, %s" % (vr(t + 1), vr(t + 1), vr(t + 3)))
            e("v_cvt_pk_bf16_f32 %s, %s, %s" % (vr(y), vr(t), vr(t + 1)))
        e("global_store_dwordx4 %s, %s, %s" % (vr(vo), vr(Y + 4 * it, 4), sr(S_OUT, 2)))
        if it < 3:
            e("v_add_u32 %s, 163840, %s" % (vr(vo), vr(vo)))
    e("s_endpgm")
    a.label("L_storeB", pad=False)
    for it in range(4):
        e("s_waitcnt lgkmcnt(%d)" % (6 - 2 * it))
        e("global_store_dwordx4 %s, %s, %s" % (vr(vo), vr(Y + 4 * it, 4), sr(S_OUT, 2)))
        if it < 3:
            e("v_add_u32 %s, 163840, %s" % (vr(vo), vr(vo)))
    a.label("L_end", pad=False)
    e("s_endpgm")
    nv = a.maxv + 1
    a.raw('.section .rodata,"a"')
    a.raw(".p2align 6")
    a.raw(".amdhsa_kernel %s_kernel" % NAME)
    a.raw("  .amdhsa_next_free_vgpr %d" % nv)
    a.raw("  .amdhsa_next_free_sgpr 102")
    a.raw("  .amdhsa_accum_offset %d" % ((nv + 3) // 4 * 4))
    a.raw("  .amdhsa_group_segment_fixed_size 0")
    a.raw("  .amdhsa_kernarg_size 144")
    a.raw("  .amdhsa_user_sgpr_count 2")
    a.raw("  .amdhsa_user_sgpr_kernarg_segment_ptr 1")
    a.raw("  .amdhsa_system_sgpr_workgroup_id_x 1")
    a.raw(".end_amdhsa_kernel")
    return a


if __name__ == "__main__":
    out = sys.argv[1] if len(sys.argv) > 1 else "cdna_kernels/%s.s" % NAME
    a = gen()
    open(out, "w").write(a.text())
    print("instructions:", a.count, "maxv", a.maxv, "maxs", a.maxs)
```

```python
import sys, re
NAME = "concat_heads__ssm_conv_h3__ssm_conv_s4__prompt"
base = open(sys.argv[1]).read()
m = re.search(r"; @launch grid=\((\d+),1,1\) block=\((\d+),1,1\) lds=(\d+)", base)
main_launch = "; @launch kernel=%s_kernel grid=(%s,1,1) block=(%s,1,1) lds=%s" % (NAME, m.group(1), m.group(2), m.group(3))
kd = """.p2align 6
.amdhsa_kernel amp_kernel
  .amdhsa_next_free_vgpr 16
  .amdhsa_next_free_sgpr 64
  .amdhsa_accum_offset 16
  .amdhsa_group_segment_fixed_size 0
  .amdhsa_kernarg_size 144
  .amdhsa_user_sgpr_count 2
  .amdhsa_user_sgpr_kernarg_segment_ptr 1
  .amdhsa_system_sgpr_workgroup_id_x 1
.end_amdhsa_kernel
"""
def amp(widx, i0, i1, K):
    return f""".globl amp_kernel
.p2align 8
.type amp_kernel,@function
amp_kernel:
    s_cmp_ge_u32 s2, 1
    s_cbranch_scc1 L_amp_end
    s_load_dwordx2 s[4:5], s[0:1], 136
    s_waitcnt lgkmcnt(0)
    v_mov_b32 v1, {widx * 64}
    global_load_dword v2, v1, s[4:5] offset:{4 * i0}
    global_load_dword v3, v1, s[4:5] offset:{4 * i1}
    s_waitcnt vmcnt(0)
    v_sub_u32 v2, v3, v2
    s_nop 1
    v_readfirstlane_b32 s6, v2
    s_nop 3
    s_min_u32 s6, s6, 100000
    s_mul_i32 s6, s6, {K}
    s_memtime s[8:9]
    s_waitcnt lgkmcnt(0)
L_amp_loop:
    s_memtime s[10:11]
    s_waitcnt lgkmcnt(0)
    s_sub_u32 s12, s10, s8
    s_cmp_lt_u32 s12, s6
    s_cbranch_scc1 L_amp_loop
L_amp_end:
    s_endpgm
"""
def make(out, code):
    s = base.replace(m.group(0), main_launch + "\n; @launch kernel=amp_kernel grid=(1,1,1) block=(64,1,1) lds=0")
    s = s.replace('.section .rodata,"a"', code + '.section .rodata,"a"', 1) + kd
    open(out, "w").write(s)
make("amp0.s", amp(9, 0, 0, 0))
make("amp1.s", amp(9, 0, 14, 4))
make("amp2.s", amp(1, 0, 6, 8))
make("amp3.s", amp(1208, 0, 3, 8))
make("amp4.s", amp(1200, 0, 14, 4))
make("amp5.s", amp(5, 6, 11, 4))

def amp_rt(widx, K):
    return amp(widx, 1, 15, K).replace("s_memtime", "s_memrealtime").replace("100000", "5000")
def amp_span(K, startonly=False):
    loads = ""
    code = f""".globl amp_kernel
.p2align 8
.type amp_kernel,@function
amp_kernel:
    s_cmp_ge_u32 s2, 1
    s_cbranch_scc1 L_amp_end
    s_load_dwordx2 s[4:5], s[0:1], 136
    s_waitcnt lgkmcnt(0)
    v_mov_b32 v8, 0
    global_load_dword v9, v8, s[4:5] offset:4
    v_lshlrev_b32 v1, 6, v0
    v_mov_b32 v4, 0x7fffffff
    v_mov_b32 v5, 0x80000000
    s_mov_b32 s13, 0
    s_waitcnt vmcnt(0)
L_amp_ld:
    global_load_dword v2, v1, s[4:5] offset:4
    global_load_dword v3, v1, s[4:5] offset:{4 if startonly else 60}
    s_waitcnt vmcnt(0)
    v_sub_u32 v2, v2, v9
    v_sub_u32 v3, v3, v9
    v_min_i32 v4, v4, v2
    v_max_i32 v5, v5, v3
    v_add_u32 v1, 4096, v1
    s_add_u32 s13, s13, 1
    s_cmp_lt_u32 s13, 42
    s_cbranch_scc1 L_amp_ld
    s_mov_b32 s14, 0x7fffffff
    s_mov_b32 s15, 0x80000000
    s_mov_b32 s13, 0
L_amp_rd:
    s_nop 4
    v_readlane_b32 s16, v4, s13
    v_readlane_b32 s17, v5, s13
    s_nop 4
    s_min_i32 s14, s14, s16
    s_max_i32 s15, s15, s17
    s_add_u32 s13, s13, 1
    s_cmp_lt_u32 s13, 64
    s_cbranch_scc1 L_amp_rd
    s_sub_u32 s6, s15, s14
    s_min_u32 s6, s6, 5000
    s_mul_i32 s6, s6, {K}
    s_memrealtime s[8:9]
    s_waitcnt lgkmcnt(0)
L_amp_loop:
    s_memrealtime s[10:11]
    s_waitcnt lgkmcnt(0)
    s_sub_u32 s12, s10, s8
    s_cmp_lt_u32 s12, s6
    s_cbranch_scc1 L_amp_loop
L_amp_end:
    s_endpgm
"""
    return code
make("amp6.s", amp_rt(9, 4))
make("amp7.s", amp_span(0))
make("amp8.s", amp_span(4))
make("amp9.s", amp_span(8, True))
```
